```python
import torch

def _softmax(x, axis=-1):
    return torch.softmax(x, dim=axis)

def _gelu(x):
    return torch.nn.functional.gelu(x, approximate='tanh')

def _silu(x):
    return torch.nn.functional.silu(x)

def _sigmoid(x):
    return torch.sigmoid(x)

def _layernorm(x, axis=-1, eps=1e-05):
    m = x.mean(dim=axis, keepdim=True)
    v = x.var(dim=axis, keepdim=True, unbiased=False)
    return (x - m) / torch.sqrt(v + eps)

def _scatter_add(tgt, idx, src, axis=0):
    return tgt.clone().index_add_(axis, idx, src)

def _segment_sum(src, seg, n):
    out = torch.zeros((n,) + src.shape[1:], dtype=src.dtype)
    return out.index_add_(0, seg, src)

def _pad(x, pw):
    flat = tuple((v for pair in reversed(pw) for v in pair))
    return torch.nn.functional.pad(x, flat)
kernel_name = 'standalone__tree_speculative_verify_tree_attention_over_candidate_token_tree__decode'

def setup_inputs():

    _w = lambda a: (lambda t: t.to(torch.bfloat16) if t.is_floating_point() else t)(torch.as_tensor(a))
    B, Hq, Hkv, T, C, D = (4, 32, 32, 1, 8192, 128)
    tree_mask = torch.zeros((B, T, T), dtype=float)
    for b in range(B):
        parent = torch.zeros(T, dtype=torch.int64)
        for i in range(1, T):
            parent[i] = int(torch.randint(0, i, (1,)).item())
        for i in range(T):
            j = i
            tree_mask[b, i, j] = 1.0
            while j > 0:
                j = parent[j]
                tree_mask[b, i, j] = 1.0
    return {'q': _w((lambda *s: torch.randn(*s, dtype=torch.bfloat16) * 0.8)(B, Hq, T, D)), 'k_cache': _w((lambda *s: torch.randn(*s, dtype=torch.bfloat16) * 0.8)(B, Hkv, C, D)), 'v_cache': _w((lambda *s: torch.randn(*s, dtype=torch.bfloat16) * 0.05)(B, Hkv, C, D)), 'k_tree': _w((lambda *s: torch.randn(*s, dtype=torch.bfloat16) * 0.8)(B, Hkv, T, D)), 'v_tree': _w((lambda *s: torch.randn(*s, dtype=torch.bfloat16) * 0.05)(B, Hkv, T, D)), 'tree_mask': _w(tree_mask)}

def reference(q, k_cache, v_cache, k_tree, v_tree, tree_mask):
    B, Hq, T, D = q.shape
    Hkv, C = (k_cache.shape[1], k_cache.shape[2])
    rep = Hq // Hkv
    kc = (lambda x, n, axis: torch.repeat_interleave(x, n, dim=axis))(k_cache, rep, axis=1)
    vc = (lambda x, n, axis: torch.repeat_interleave(x, n, dim=axis))(v_cache, rep, axis=1)
    kt = (lambda x, n, axis: torch.repeat_interleave(x, n, dim=axis))(k_tree, rep, axis=1)
    vt = (lambda x, n, axis: torch.repeat_interleave(x, n, dim=axis))(v_tree, rep, axis=1)
    k = torch.concatenate([kc, kt], axis=2)
    v = torch.concatenate([vc, vt], axis=2)
    scale = D ** (-0.5)
    scores = torch.einsum('bhqd,bhkd->bhqk', q, k) * scale
    ctx_mask = torch.ones((B, 1, T, C), dtype=scores.dtype)
    tm = tree_mask[:, None, :, :].clone()
    full_mask = torch.concatenate([ctx_mask, tm], axis=-1)
    scores = scores + (1.0 - full_mask) * -1000000000.0
    p = _softmax(scores, axis=-1)
    return torch.einsum('bhqk,bhkd->bhqd', p, v)
```

```python
import sys, argparse

KNAME = "standalone__tree_speculative_verify_tree_attention_over_candidate_token_tree__decode_kernel"

HEADER = """; Kernarg layout for this problem (72 bytes, ptrs only, base s[0:1]):
"""

class G:
    def __init__(self):
        self.l = []
    def __call__(self, s):
        for x in s.split("\n"):
            self.l.append("    " + x.strip() if x.strip() and not x.strip().endswith(":") else x.strip())
    def text(self):
        return "\n".join(self.l) + "\n"

def gen(split=2, waves=8, nl=16, mode="full", cache="nt", pattern="inter", headmap="xcd", name=KNAME):
    g = G()
    nwg = 128 * split
    keys_wg = 8192 // split
    tk = 4 * nl
    nt = keys_wg // (waves * tk)
    assert nt >= 1 and nt * waves * tk == keys_wg
    assert nl == 16
    tile_bytes = tk * 256
    wg_bytes = keys_wg * 256
    cm = (" " + cache) if cache else ""

    sK, sV = 4, 8
    sOff = 12
    sArg = 16
    sQ, sKp, sVp, sKT, sVT, sMask, sOut, sDbg = 16, 18, 20, 22, 24, 26, 28, 30
    sWs = 32
    sHead, sSplit, sWave, sCnt = 34, 35, 36, 37
    sBit1, sBit0 = 38, 40
    sScale = 42
    sT0, sT1, sT2, sT3 = 43, 44, 45, 46
    sOwn = 48
    sStride = 47
    nsgpr = 56
    vLane16 = 1
    vM, vL = 2, 3
    vQ = 4
    vAcc = 8
    vS = 16
    vT = 32
    vPA, vPB, vAl = 40, 41, 42
    vMn = 43
    vK = 44
    vV = vK + 4 * nl
    nvgpr = vV + 4 * nl

    def kload(i, first=False):
        g(f"buffer_load_dwordx4 v[{vK+4*i}:{vK+4*i+3}], v{vLane16}, s[{sK}:{sK+3}], s{sOff+i//4} offen offset:{(i%4)*1024}{cm}")
    def vload(i):
        g(f"buffer_load_dwordx4 v[{vV+4*i}:{vV+4*i+3}], v{vLane16}, s[{sV}:{sV+3}], s{sOff+i//4} offen offset:{(i%4)*1024}{cm}")

    g(f"s_cmp_ge_u32 s2, {nwg}")
    g("s_cbranch_scc1 L_end")
    g(f"s_load_dwordx16 s[{sArg}:{sArg+15}], s[0:1], 0")
    g(f"s_load_dwordx2 s[{sWs}:{sWs+1}], s[0:1], 64")
    g(f"v_lshrrev_b32 v{vT}, 6, v0")
    g(f"v_and_b32 v0, 63, v0")
    g(f"v_readfirstlane_b32 s{sWave}, v{vT}")
    g(f"v_lshlrev_b32 v{vLane16}, 4, v0")
    if split == 1:
        g(f"s_mov_b32 s{sHead}, s2")
        g(f"s_mov_b32 s{sSplit}, 0")
    elif headmap == "xcd":
        lg = split.bit_length() - 1
        g(f"s_and_b32 s{sT0}, s2, 7")
        g(f"s_lshr_b32 s{sT1}, s2, {3+lg}")
        g(f"s_lshl_b32 s{sT1}, s{sT1}, 3")
        g(f"s_or_b32 s{sHead}, s{sT0}, s{sT1}")
        g(f"s_lshr_b32 s{sSplit}, s2, 3")
        g(f"s_and_b32 s{sSplit}, s{sSplit}, {split-1}")
    else:
        lg = split.bit_length() - 1
        g(f"s_lshr_b32 s{sHead}, s2, {lg}")
        g(f"s_and_b32 s{sSplit}, s2, {split-1}")
    g(f"s_lshl_b32 s{sT0}, s{sHead}, 21")
    g(f"s_mul_i32 s{sT1}, s{sSplit}, {wg_bytes}")
    g(f"s_add_u32 s{sT0}, s{sT0}, s{sT1}")
    if pattern == "inter":
        g(f"s_mul_i32 s{sOff}, s{sWave}, {tile_bytes}")
        stride = tile_bytes * waves
    else:
        g(f"s_mul_i32 s{sOff}, s{sWave}, {tile_bytes*nt}")
        stride = tile_bytes
    g(f"s_add_u32 s{sOff+1}, s{sOff}, 4096")
    g(f"s_add_u32 s{sOff+2}, s{sOff}, 8192")
    g(f"s_add_u32 s{sOff+3}, s{sOff}, 12288")
    g(f"v_and_b32 v{vT}, 15, v0")
    g(f"v_lshlrev_b32 v{vT}, 4, v{vT}")
    g(f"s_lshl_b32 s{sT1}, s{sHead}, 8")
    g(f"v_add_u32 v{vT}, s{sT1}, v{vT}")
    g(f"s_lshr_b32 s{sT1}, s{sHead}, 5")
    g(f"s_lshl_b32 s{sT1}, s{sT1}, 1")
    g(f"v_mov_b32 v{vT+1}, s{sT1}")
    g("s_waitcnt lgkmcnt(0)")
    g(f"s_add_u32 s{sK}, s{sKp}, s{sT0}")
    g(f"s_addc_u32 s{sK+1}, s{sKp+1}, 0")
    g(f"s_and_b32 s{sK+1}, s{sK+1}, 0xffff")
    g(f"s_mov_b32 s{sK+2}, {wg_bytes}")
    g(f"s_mov_b32 s{sK+3}, 0x00020000")
    g(f"s_add_u32 s{sV}, s{sVp}, s{sT0}")
    g(f"s_addc_u32 s{sV+1}, s{sVp+1}, 0")
    g(f"s_and_b32 s{sV+1}, s{sV+1}, 0xffff")
    g(f"s_mov_b32 s{sV+2}, {wg_bytes}")
    g(f"s_mov_b32 s{sV+3}, 0x00020000")
    g(f"global_load_dwordx4 v[{vQ}:{vQ+3}], v{vT}, s[{sQ}:{sQ+1}]")
    g(f"global_load_dwordx4 v[{vS}:{vS+3}], v{vT}, s[{sKT}:{sKT+1}]")
    g(f"global_load_dwordx4 v[{vS+4}:{vS+7}], v{vT}, s[{sVT}:{sVT+1}]")
    g(f"global_load_ushort v{vS+8}, v{vT+1}, s[{sMask}:{sMask+1}]")
    for i in range(nl): kload(i)
    for i in range(nl): vload(i)
    g(f"s_mov_b32 s{sBit1}, 0xcccccccc")
    g(f"s_mov_b32 s{sBit1+1}, 0xcccccccc")
    g(f"s_mov_b32 s{sBit0}, 0xaaaaaaaa")
    g(f"s_mov_b32 s{sBit0+1}, 0xaaaaaaaa")
    import math, struct
    c = (128 ** -0.5) * math.log2(math.e)
    cbits = struct.unpack("<I", struct.pack("<f", c))[0]
    g(f"s_mov_b32 s{sScale}, 0x{cbits:08x}")
    g(f"s_or_b32 s{sT1}, s{sSplit}, s{sWave}")
    g(f"s_cmp_eq_u32 s{sT1}, 0")
    g(f"s_cselect_b32 s{sOwn}, 0xffff, 0")
    g(f"s_mov_b32 s{sOwn+1}, 0")
    g(f"s_waitcnt vmcnt({2*nl})")
    g(f"v_dot2_f32_bf16 v{vT}, v{vS}, v{vQ}, 0")
    g(f"v_dot2_f32_bf16 v{vT}, v{vS+1}, v{vQ+1}, v{vT}")
    g(f"v_dot2_f32_bf16 v{vT}, v{vS+2}, v{vQ+2}, v{vT}")
    g(f"v_dot2_f32_bf16 v{vT}, v{vS+3}, v{vQ+3}, v{vT}")
    g(f"v_lshlrev_b32 v{vS+8}, 16, v{vS+8}")
    g(f"v_sub_f32 v{vS+8}, 1.0, v{vS+8}")
    lg2e = struct.unpack("<I", struct.pack("<f", -1e9 * math.log2(math.e)))[0]
    g(f"v_mul_f32 v{vS+8}, 0x{lg2e:08x}, v{vS+8}")
    for r in (8, 4, 2, 1):
        g("s_nop 1")
        g(f"v_add_f32_dpp v{vT}, v{vT}, v{vT} row_ror:{r} row_mask:0xf bank_mask:0xf")
    g(f"v_fma_f32 v{vT}, v{vT}, s{sScale}, v{vS+8}")
    g(f"v_mov_b32 v{vM}, 0xff800000")
    g(f"v_mov_b32 v{vL}, 0")
    g(f"v_cndmask_b32 v{vM}, v{vM}, v{vT}, s[{sOwn}:{sOwn+1}]")
    g(f"s_and_b32 s{sT1}, s{sOwn}, 1")
    g(f"s_mov_b32 s{sT2}, s{sT1}")
    g(f"s_mov_b32 s{sT3}, 0")
    g(f"v_cndmask_b32 v{vL}, 0, 1.0, s[{sT2}:{sT2+1}]") if (sT2 % 2 == 0) else None
    if sT2 % 2 != 0:
        g(f"s_mov_b32 s50, s{sT1}")
        g(f"s_mov_b32 s51, 0")
        g(f"v_cndmask_b32 v{vL}, 0, 1.0, s[50:51]")
    for e in range(4):
        g(f"v_lshlrev_b32 v{vT+1}, 16, v{vS+4+e}")
        g(f"v_and_b32 v{vT+2}, 0xffff0000, v{vS+4+e}")
        g(f"v_cndmask_b32 v{vAcc+2*e}, 0, v{vT+1}, s[{sOwn}:{sOwn+1}]")
        g(f"v_cndmask_b32 v{vAcc+2*e+1}, 0, v{vT+2}, s[{sOwn}:{sOwn+1}]")

    def tile(last):
        if not last:
            for j in range(4):
                g(f"s_add_u32 s{sOff+j}, s{sOff+j}, {stride}")
        for i in range(0, nl, 2):
            n = (2*nl - 2) if not last else (2*nl - 2 - i)
            g(f"s_waitcnt vmcnt({n})")
            if mode == "full":
                for e in range(4):
                    for k in (i, i+1):
                        c_ = "0" if e == 0 else f"v{vS+k}"
                        g(f"v_dot2_f32_bf16 v{vS+k}, v{vK+4*k+e}, v{vQ+e}, {c_}")
            if not last:
                kload(i); kload(i+1)
        if mode == "full":
            if last: g("s_nop 1")
            for j in range(8):
                g(f"v_add_f32_dpp v{vS+j}, v{vS+j}, v{vS+j} row_ror:8 row_mask:0xf bank_mask:0x3")
                g(f"v_add_f32_dpp v{vS+j}, v{vS+j+8}, v{vS+j+8} row_ror:8 row_mask:0xf bank_mask:0xc")
            for j in range(4):
                g(f"v_add_f32_dpp v{vS+j}, v{vS+j}, v{vS+j} row_shl:4 row_mask:0xf bank_mask:0x5")
                g(f"v_add_f32_dpp v{vS+j}, v{vS+j+4}, v{vS+j+4} row_shr:4 row_mask:0xf bank_mask:0xa")
            g(f"v_add_f32_dpp v{vT}, v{vS}, v{vS} quad_perm:[2,3,0,1] row_mask:0xf bank_mask:0xf")
            g(f"v_add_f32_dpp v{vT+1}, v{vS+2}, v{vS+2} quad_perm:[2,3,0,1] row_mask:0xf bank_mask:0xf")
            g(f"v_add_f32_dpp v{vT+2}, v{vS+1}, v{vS+1} quad_perm:[2,3,0,1] row_mask:0xf bank_mask:0xf")
            g(f"v_add_f32_dpp v{vT+3}, v{vS+3}, v{vS+3} quad_perm:[2,3,0,1] row_mask:0xf bank_mask:0xf")
            g(f"v_cndmask_b32 v{vT}, v{vT}, v{vT+1}, s[{sBit1}:{sBit1+1}]")
            g(f"v_cndmask_b32 v{vT+2}, v{vT+2}, v{vT+3}, s[{sBit1}:{sBit1+1}]")
            g("s_nop 0")
            g(f"v_add_f32_dpp v{vT+1}, v{vT}, v{vT} quad_perm:[1,0,3,2] row_mask:0xf bank_mask:0xf")
            g(f"v_add_f32_dpp v{vT+3}, v{vT+2}, v{vT+2} quad_perm:[1,0,3,2] row_mask:0xf bank_mask:0xf")
            g(f"v_cndmask_b32 v{vT}, v{vT+1}, v{vT+3}, s[{sBit0}:{sBit0+1}]")
            g(f"v_mul_f32 v{vT}, s{sScale}, v{vT}")
            g("s_nop 1")
            g(f"v_max_f32_dpp v{vT+1}, v{vT}, v{vT} row_ror:8 row_mask:0xf bank_mask:0xf")
            for r in (4, 2, 1):
                g("s_nop 1")
                g(f"v_max_f32_dpp v{vT+1}, v{vT+1}, v{vT+1} row_ror:{r} row_mask:0xf bank_mask:0xf")
            g(f"v_max_f32 v{vMn}, v{vM}, v{vT+1}")
            g(f"v_sub_f32 v{vAl}, v{vM}, v{vMn}")
            g(f"v_sub_f32 v{vT}, v{vT}, v{vMn}")
            g(f"v_exp_f32 v{vAl}, v{vAl}")
            g(f"v_exp_f32 v{vT}, v{vT}")
            g(f"v_mov_b32 v{vM}, v{vMn}")
            g(f"v_cvt_pk_bf16_f32 v{vPA}, v{vT}, 0")
            g(f"v_cvt_pk_bf16_f32 v{vPB}, 0, v{vT}")
            g(f"v_fma_f32 v{vL}, v{vL}, v{vAl}, v{vT}")
            for j in range(8):
                g(f"v_mul_f32 v{vAcc+j}, v{vAl}, v{vAcc+j}")
        for i in range(0, nl, 2):
            n = (2*nl - 2) if not last else (nl - 2 - i)
            g(f"s_waitcnt vmcnt({n})")
            if mode == "full":
                for k in (i, i+1):
                    for e in range(4):
                        g(f"v_dot2c_f32_bf16_dpp v{vAcc+2*e}, v{vPA}, v{vV+4*k+e} row_newbcast:{k} row_mask:0xf bank_mask:0xf")
                        g(f"v_dot2c_f32_bf16_dpp v{vAcc+2*e+1}, v{vPB}, v{vV+4*k+e} row_newbcast:{k} row_mask:0xf bank_mask:0xf")
            if not last:
                vload(i); vload(i+1)

    if nt > 1:
        g(f"s_mov_b32 s{sCnt}, {nt-1}")
        g(".p2align 6")
        g("L_loop:")
        tile(False)
        g(f"s_sub_u32 s{sCnt}, s{sCnt}, 1")
        g(f"s_cmp_lg_u32 s{sCnt}, 0")
        g("s_cbranch_scc1 L_loop")
    tile(True)

    g("s_nop 3")
    g(f"v_mov_b32 v{vT}, v{vM}")
    g(f"v_mov_b32 v{vT+1}, v{vM}")
    g("s_nop 1")
    g(f"v_permlane32_swap_b32 v{vT}, v{vT+1}")
    g(f"v_max_f32 v{vT}, v{vT}, v{vT+1}")
    g(f"v_mov_b32 v{vT+1}, v{vT}")
    g("s_nop 1")
    g(f"v_permlane16_swap_b32 v{vT}, v{vT+1}")
    g(f"v_max_f32 v{vMn}, v{vT}, v{vT+1}")
    g(f"v_sub_f32 v{vAl}, v{vM}, v{vMn}")
    g(f"v_exp_f32 v{vAl}, v{vAl}")
    g("s_nop 0")
    g(f"v_mul_f32 v{vL}, v{vAl}, v{vL}")
    for j in range(8):
        g(f"v_mul_f32 v{vAcc+j}, v{vAl}, v{vAcc+j}")
    for r in (8, 4, 2, 1):
        g(f"v_add_f32_dpp v{vL}, v{vL}, v{vL} row_ror:{r} row_mask:0xf bank_mask:0xf")
        if r == 8:
            for j in range(4):
                g(f"v_permlane32_swap_b32 v{vAcc+j}, v{vAcc+j+4}")
        elif r == 4:
            for j in range(4):
                g(f"v_add_f32 v{vAcc+j}, v{vAcc+j}, v{vAcc+j+4}")
        elif r == 2:
            g("s_nop 0")
            for j in range(2):
                g(f"v_permlane16_swap_b32 v{vAcc+j}, v{vAcc+j+2}")
        else:
            for j in range(2):
                g(f"v_add_f32 v{vAcc+j}, v{vAcc+j}, v{vAcc+j+2}")
    g(f"v_mov_b32 v{vT}, v{vL}")
    g("s_nop 1")
    g(f"v_permlane32_swap_b32 v{vT}, v{vL}")
    g(f"v_add_f32 v{vL}, v{vT}, v{vL}")
    g(f"v_mov_b32 v{vT}, v{vL}")
    g("s_nop 1")
    g(f"v_permlane16_swap_b32 v{vT}, v{vL}")
    g(f"v_add_f32 v{vAcc+3}, v{vT}, v{vL}")
    g(f"v_mov_b32 v{vAcc+2}, v{vMn}")
    vR = vK
    lds = 0
    if waves > 1:
        lds = waves * 1024
        g(f"s_lshl_b32 s{sT1}, s{sWave}, 10")
        g(f"v_add_u32 v{vT}, s{sT1}, v{vLane16}")
        g(f"ds_write_b128 v{vT}, v[{vAcc}:{vAcc+3}]")
        g("s_waitcnt lgkmcnt(0)")
        g("s_barrier")
        g(f"s_cmp_lg_u32 s{sWave}, 0")
        g("s_cbranch_scc1 L_end")
        for w in range(waves):
            g(f"ds_read_b128 v[{vR+4*w}:{vR+4*w+3}], v{vLane16} offset:{w*1024}")
        def combine(n):
            g(f"v_mov_b32 v{vAcc+2}, v{vR+2}")
            for i in range(1, n):
                g(f"v_max_f32 v{vAcc+2}, v{vAcc+2}, v{vR+4*i+2}")
            for i in range(n):
                g(f"v_sub_f32 v{vR+4*i+2}, v{vR+4*i+2}, v{vAcc+2}")
            for i in range(n):
                g(f"v_exp_f32 v{vR+4*i+2}, v{vR+4*i+2}")
            g("s_nop 0")
            for j in (0, 1, 3):
                g(f"v_mul_f32 v{vAcc+j}, v{vR+j}, v{vR+2}")
            for i in range(1, n):
                for j in (0, 1, 3):
                    g(f"v_fma_f32 v{vAcc+j}, v{vR+4*i+j}, v{vR+4*i+2}, v{vAcc+j}")
        g("s_waitcnt lgkmcnt(0)")
        combine(waves)
    else:
        def combine(n):
            raise NotImplementedError
    if split > 1:
        g(f"s_mul_i32 s{sT1}, s{sHead}, {split*1024}")
        g(f"s_lshl_b32 s{sT2}, s{sSplit}, 10")
        g(f"v_add_u32 v{vT+1}, s{sT1}, v{vLane16}")
        g(f"v_add_u32 v{vT}, s{sT2}, v{vT+1}")
        g(f"global_store_dwordx4 v{vT}, v[{vAcc}:{vAcc+3}], s[{sWs}:{sWs+1}] sc0 sc1")
        g(f"s_lshr_b32 s{sT1}, s{sHead}, 1")
        g(f"s_lshl_b32 s{sT1}, s{sT1}, 2")
        g(f"s_and_b32 s{sT2}, s{sHead}, 1")
        g(f"s_lshl_b32 s{sT2}, s{sT2}, 4")
        g(f"s_lshl_b32 s{sT3}, 1, s{sT2}")
        g(f"v_mov_b32 v{vT+2}, s{sT1}")
        g(f"v_mov_b32 v{vT+3}, s{sT3}")
        g("s_waitcnt vmcnt(0)")
        g("s_mov_b64 exec, 1")
        g(f"global_atomic_add v{vT+4}, v{vT+2}, v{vT+3}, s[{sDbg}:{sDbg+1}] sc0")
        g("s_waitcnt vmcnt(0)")
        g(f"v_readfirstlane_b32 s{sT1}, v{vT+4}")
        g("s_mov_b64 exec, -1")
        g(f"s_lshr_b32 s{sT1}, s{sT1}, s{sT2}")
        g(f"s_and_b32 s{sT1}, s{sT1}, 0xffff")
        g(f"s_cmp_lg_u32 s{sT1}, {split-1}")
        g("s_cbranch_scc1 L_end")
        for i in range(split):
            g(f"global_load_dwordx4 v[{vR+4*i}:{vR+4*i+3}], v{vT+1}, s[{sWs}:{sWs+1}] offset:{i*1024} sc0 sc1")
        g("s_waitcnt vmcnt(0)")
        combine(split)
    g(f"v_rcp_f32 v{vT}, v{vAcc+3}")
    g(f"v_and_b32 v{vT+1}, 15, v0")
    g(f"v_lshrrev_b32 v{vT+2}, 4, v0")
    g(f"v_lshl_add_u32 v{vT+1}, v{vT+1}, 2, v{vT+2}")
    g(f"v_lshlrev_b32 v{vT+1}, 2, v{vT+1}")
    g(f"s_lshl_b32 s{sT1}, s{sHead}, 8")
    g(f"v_add_u32 v{vT+1}, s{sT1}, v{vT+1}")
    g(f"v_mul_f32 v{vAcc}, v{vAcc}, v{vT}")
    g(f"v_mul_f32 v{vAcc+1}, v{vAcc+1}, v{vT}")
    g(f"v_cvt_pk_bf16_f32 v{vAcc}, v{vAcc}, v{vAcc+1}")
    g(f"global_store_dword v{vT+1}, v{vAcc}, s[{sOut}:{sOut+1}]")
    g("L_end:")
    g("s_endpgm")

    body = g.text()
    out = HEADER
    out += f"; @launch grid=({nwg},1,1) block=({waves*64},1,1) lds={lds}\n"
    out += '.amdgcn_target "amdgcn-amd-amdhsa--gfx950"\n.text\n'
    out += f".globl {name}\n.p2align 8\n.type {name},@function\n{name}:\n"
    out += body
    out += f""".section .rodata,"a"
.p2align 6
.amdhsa_kernel {name}
  .amdhsa_next_free_vgpr {nvgpr}
  .amdhsa_next_free_sgpr {nsgpr}
  .amdhsa_accum_offset {(nvgpr+3)//4*4}
  .amdhsa_group_segment_fixed_size 0
  .amdhsa_kernarg_size 72
  .amdhsa_user_sgpr_count 2
  .amdhsa_user_sgpr_kernarg_segment_ptr 1
  .amdhsa_system_sgpr_workgroup_id_x 1
  .amdhsa_float_denorm_mode_32 3
.end_amdhsa_kernel
"""
    return out

if __name__ == "__main__":
    ap = argparse.ArgumentParser()
    ap.add_argument("--split", type=int, default=2)
    ap.add_argument("--waves", type=int, default=8)
    ap.add_argument("--mode", default="full")
    ap.add_argument("--cache", default="nt")
    ap.add_argument("--pattern", default="inter")
    ap.add_argument("--headmap", default="xcd")
    ap.add_argument("-o", default="-")
    a = ap.parse_args()
    s = gen(split=a.split, waves=a.waves, mode=a.mode, cache=a.cache, pattern=a.pattern, headmap=a.headmap)
    if a.o == "-": sys.stdout.write(s)
    else: open(a.o, "w").write(s)
```

```python
import sys, argparse

KNAME = "standalone__tree_speculative_verify_tree_attention_over_candidate_token_tree__decode_kernel"

HEADER = """; Kernarg layout for this problem (72 bytes, ptrs only, base s[0:1]):
"""

class G:
    def __init__(self):
        self.l = []
    def __call__(self, s):
        for x in s.split("\n"):
            self.l.append("    " + x.strip() if x.strip() and not x.strip().endswith(":") else x.strip())
    def text(self):
        return "\n".join(self.l) + "\n"

def gen(split=2, waves=8, nl=16, mode="full", cache="nt", pattern="inter", headmap="xcd", name=KNAME, diag=False, unroll=False, cachev=None):
    g = G()
    vStamp = 200
    def stamp(k):
        if not diag: return
        g("s_memrealtime s[60:61]")
        g("s_waitcnt lgkmcnt(0)")
        g(f"v_writelane_b32 v{vStamp}, s60, {k}")
    nwg = 128 * split
    keys_wg = 8192 // split
    tk = 4 * nl
    nt = keys_wg // (waves * tk)
    assert nt >= 1 and nt * waves * tk == keys_wg
    assert nl == 16
    tile_bytes = tk * 256
    wg_bytes = keys_wg * 256
    cm = (" " + cache) if cache else ""
    if cachev is None: cachev = cache
    cmv = (" " + cachev) if cachev else ""

    sK, sV = 4, 8
    sOff = 12
    sArg = 16
    sQ, sKp, sVp, sKT, sVT, sMask, sOut, sDbg = 16, 18, 20, 22, 24, 26, 28, 30
    sWs = 32
    sHead, sSplit, sWave, sCnt = 34, 35, 36, 37
    sBit1, sBit0 = 38, 40
    sScale = 42
    sT0, sT1, sT2, sT3 = 43, 44, 45, 46
    sOwn = 48
    sStride = 47
    nsgpr = 56
    vLane16 = 1
    vM, vL = 2, 3
    vQ = 4
    vAcc = 8
    vS = 16
    vT = 32
    vPA, vPB, vAl = 40, 41, 42
    vMn = 43
    vK = 44
    vV = vK + 4 * nl
    nvgpr = vV + 4 * nl
    if diag:
        nvgpr = vStamp + 1
        nsgpr = 64

    def kload(i, first=False):
        g(f"buffer_load_dwordx4 v[{vK+4*i}:{vK+4*i+3}], v{vLane16}, s[{sK}:{sK+3}], s{sOff+i//4} offen offset:{(i%4)*1024}{cm}")
    def vload(i):
        g(f"buffer_load_dwordx4 v[{vV+4*i}:{vV+4*i+3}], v{vLane16}, s[{sV}:{sV+3}], s{sOff+i//4} offen offset:{(i%4)*1024}{cmv}")

    g(f"s_cmp_ge_u32 s2, {nwg}")
    g("s_cbranch_scc1 L_end")
    if diag:
        g(f"v_mov_b32 v{vStamp}, 0")
        stamp(0)
    g(f"s_load_dwordx16 s[{sArg}:{sArg+15}], s[0:1], 0")
    g(f"s_load_dwordx2 s[{sWs}:{sWs+1}], s[0:1], 64")
    g(f"v_lshrrev_b32 v{vT}, 6, v0")
    g(f"v_and_b32 v0, 63, v0")
    g(f"v_readfirstlane_b32 s{sWave}, v{vT}")
    g(f"v_lshlrev_b32 v{vLane16}, 4, v0")
    if split == 1:
        g(f"s_mov_b32 s{sHead}, s2")
        g(f"s_mov_b32 s{sSplit}, 0")
    elif headmap == "xcd":
        lg = split.bit_length() - 1
        g(f"s_and_b32 s{sT0}, s2, 7")
        g(f"s_lshr_b32 s{sT1}, s2, {3+lg}")
        g(f"s_lshl_b32 s{sT1}, s{sT1}, 3")
        g(f"s_or_b32 s{sHead}, s{sT0}, s{sT1}")
        g(f"s_lshr_b32 s{sSplit}, s2, 3")
        g(f"s_and_b32 s{sSplit}, s{sSplit}, {split-1}")
    else:
        lg = split.bit_length() - 1
        g(f"s_lshr_b32 s{sHead}, s2, {lg}")
        g(f"s_and_b32 s{sSplit}, s2, {split-1}")
    g(f"s_lshl_b32 s{sT0}, s{sHead}, 21")
    g(f"s_mul_i32 s{sT1}, s{sSplit}, {wg_bytes}")
    g(f"s_add_u32 s{sT0}, s{sT0}, s{sT1}")
    if pattern == "inter":
        g(f"s_mul_i32 s{sOff}, s{sWave}, {tile_bytes}")
        stride = tile_bytes * waves
    else:
        g(f"s_mul_i32 s{sOff}, s{sWave}, {tile_bytes*nt}")
        stride = tile_bytes
    g(f"s_add_u32 s{sOff+1}, s{sOff}, 4096")
    g(f"s_add_u32 s{sOff+2}, s{sOff}, 8192")
    g(f"s_add_u32 s{sOff+3}, s{sOff}, 12288")
    g(f"v_and_b32 v{vT}, 15, v0")
    g(f"v_lshlrev_b32 v{vT}, 4, v{vT}")
    g(f"s_lshl_b32 s{sT1}, s{sHead}, 8")
    g(f"v_add_u32 v{vT}, s{sT1}, v{vT}")
    g(f"s_lshr_b32 s{sT1}, s{sHead}, 5")
    g(f"s_lshl_b32 s{sT1}, s{sT1}, 1")
    g(f"v_mov_b32 v{vT+1}, s{sT1}")
    g("s_waitcnt lgkmcnt(0)")
    stamp(1)
    g(f"s_add_u32 s{sK}, s{sKp}, s{sT0}")
    g(f"s_addc_u32 s{sK+1}, s{sKp+1}, 0")
    g(f"s_and_b32 s{sK+1}, s{sK+1}, 0xffff")
    g(f"s_mov_b32 s{sK+2}, {wg_bytes}")
    g(f"s_mov_b32 s{sK+3}, 0x00020000")
    g(f"s_add_u32 s{sV}, s{sVp}, s{sT0}")
    g(f"s_addc_u32 s{sV+1}, s{sVp+1}, 0")
    g(f"s_and_b32 s{sV+1}, s{sV+1}, 0xffff")
    g(f"s_mov_b32 s{sV+2}, {wg_bytes}")
    g(f"s_mov_b32 s{sV+3}, 0x00020000")
    g(f"global_load_dwordx4 v[{vQ}:{vQ+3}], v{vT}, s[{sQ}:{sQ+1}]")
    g(f"global_load_dwordx4 v[{vS}:{vS+3}], v{vT}, s[{sKT}:{sKT+1}]")
    g(f"global_load_dwordx4 v[{vS+4}:{vS+7}], v{vT}, s[{sVT}:{sVT+1}]")
    g(f"global_load_ushort v{vS+8}, v{vT+1}, s[{sMask}:{sMask+1}]")
    for i in range(nl): kload(i)
    for i in range(nl): vload(i)
    g(f"s_mov_b32 s{sBit1}, 0xcccccccc")
    g(f"s_mov_b32 s{sBit1+1}, 0xcccccccc")
    g(f"s_mov_b32 s{sBit0}, 0xaaaaaaaa")
    g(f"s_mov_b32 s{sBit0+1}, 0xaaaaaaaa")
    import math, struct
    c = (128 ** -0.5) * math.log2(math.e)
    cbits = struct.unpack("<I", struct.pack("<f", c))[0]
    g(f"s_mov_b32 s{sScale}, 0x{cbits:08x}")
    g(f"s_or_b32 s{sT1}, s{sSplit}, s{sWave}")
    g(f"s_cmp_eq_u32 s{sT1}, 0")
    g(f"s_cselect_b32 s{sOwn}, 0xffff, 0")
    g(f"s_mov_b32 s{sOwn+1}, 0")
    stamp(2)
    g(f"s_waitcnt vmcnt({2*nl})")
    stamp(3)
    g(f"v_dot2_f32_bf16 v{vT}, v{vS}, v{vQ}, 0")
    g(f"v_dot2_f32_bf16 v{vT}, v{vS+1}, v{vQ+1}, v{vT}")
    g(f"v_dot2_f32_bf16 v{vT}, v{vS+2}, v{vQ+2}, v{vT}")
    g(f"v_dot2_f32_bf16 v{vT}, v{vS+3}, v{vQ+3}, v{vT}")
    g(f"v_lshlrev_b32 v{vS+8}, 16, v{vS+8}")
    g(f"v_sub_f32 v{vS+8}, 1.0, v{vS+8}")
    lg2e = struct.unpack("<I", struct.pack("<f", -1e9 * math.log2(math.e)))[0]
    g(f"v_mul_f32 v{vS+8}, 0x{lg2e:08x}, v{vS+8}")
    for r in (8, 4, 2, 1):
        g("s_nop 1")
        g(f"v_add_f32_dpp v{vT}, v{vT}, v{vT} row_ror:{r} row_mask:0xf bank_mask:0xf")
    g(f"v_fma_f32 v{vT}, v{vT}, s{sScale}, v{vS+8}")
    g(f"v_mov_b32 v{vM}, 0xff800000")
    g(f"v_mov_b32 v{vL}, 0")
    g(f"v_cndmask_b32 v{vM}, v{vM}, v{vT}, s[{sOwn}:{sOwn+1}]")
    g(f"s_and_b32 s{sT1}, s{sOwn}, 1")
    g(f"s_mov_b32 s{sT2}, s{sT1}")
    g(f"s_mov_b32 s{sT3}, 0")
    g(f"v_cndmask_b32 v{vL}, 0, 1.0, s[{sT2}:{sT2+1}]") if (sT2 % 2 == 0) else None
    if sT2 % 2 != 0:
        g(f"s_mov_b32 s50, s{sT1}")
        g(f"s_mov_b32 s51, 0")
        g(f"v_cndmask_b32 v{vL}, 0, 1.0, s[50:51]")
    for e in range(4):
        g(f"v_lshlrev_b32 v{vT+1}, 16, v{vS+4+e}")
        g(f"v_and_b32 v{vT+2}, 0xffff0000, v{vS+4+e}")
        g(f"v_cndmask_b32 v{vAcc+2*e}, 0, v{vT+1}, s[{sOwn}:{sOwn+1}]")
        g(f"v_cndmask_b32 v{vAcc+2*e+1}, 0, v{vT+2}, s[{sOwn}:{sOwn+1}]")

    def tile(last):
        if not last:
            for j in range(4):
                g(f"s_add_u32 s{sOff+j}, s{sOff+j}, {stride}")
        for i in range(0, nl, 2):
            n = (2*nl - 2) if not last else (2*nl - 2 - i)
            g(f"s_waitcnt vmcnt({n})")
            if mode == "full":
                for e in range(4):
                    for k in (i, i+1):
                        c_ = "0" if e == 0 else f"v{vS+k}"
                        g(f"v_dot2_f32_bf16 v{vS+k}, v{vK+4*k+e}, v{vQ+e}, {c_}")
            if not last:
                kload(i); kload(i+1)
        if mode == "full":
            if last: g("s_nop 1")
            for j in range(8):
                g(f"v_add_f32_dpp v{vS+j}, v{vS+j}, v{vS+j} row_ror:8 row_mask:0xf bank_mask:0x3")
                g(f"v_add_f32_dpp v{vS+j}, v{vS+j+8}, v{vS+j+8} row_ror:8 row_mask:0xf bank_mask:0xc")
            for j in range(4):
                g(f"v_add_f32_dpp v{vS+j}, v{vS+j}, v{vS+j} row_shl:4 row_mask:0xf bank_mask:0x5")
                g(f"v_add_f32_dpp v{vS+j}, v{vS+j+4}, v{vS+j+4} row_shr:4 row_mask:0xf bank_mask:0xa")
            g(f"v_add_f32_dpp v{vT}, v{vS}, v{vS} quad_perm:[2,3,0,1] row_mask:0xf bank_mask:0xf")
            g(f"v_add_f32_dpp v{vT+1}, v{vS+2}, v{vS+2} quad_perm:[2,3,0,1] row_mask:0xf bank_mask:0xf")
            g(f"v_add_f32_dpp v{vT+2}, v{vS+1}, v{vS+1} quad_perm:[2,3,0,1] row_mask:0xf bank_mask:0xf")
            g(f"v_add_f32_dpp v{vT+3}, v{vS+3}, v{vS+3} quad_perm:[2,3,0,1] row_mask:0xf bank_mask:0xf")
            g(f"v_cndmask_b32 v{vT}, v{vT}, v{vT+1}, s[{sBit1}:{sBit1+1}]")
            g(f"v_cndmask_b32 v{vT+2}, v{vT+2}, v{vT+3}, s[{sBit1}:{sBit1+1}]")
            g("s_nop 0")
            g(f"v_add_f32_dpp v{vT+1}, v{vT}, v{vT} quad_perm:[1,0,3,2] row_mask:0xf bank_mask:0xf")
            g(f"v_add_f32_dpp v{vT+3}, v{vT+2}, v{vT+2} quad_perm:[1,0,3,2] row_mask:0xf bank_mask:0xf")
            g(f"v_cndmask_b32 v{vT}, v{vT+1}, v{vT+3}, s[{sBit0}:{sBit0+1}]")
            g(f"v_mul_f32 v{vT}, s{sScale}, v{vT}")
            g("s_nop 1")
            g(f"v_max_f32_dpp v{vT+1}, v{vT}, v{vT} row_ror:8 row_mask:0xf bank_mask:0xf")
            for r in (4, 2, 1):
                g("s_nop 1")
                g(f"v_max_f32_dpp v{vT+1}, v{vT+1}, v{vT+1} row_ror:{r} row_mask:0xf bank_mask:0xf")
            g(f"v_max_f32 v{vMn}, v{vM}, v{vT+1}")
            g(f"v_sub_f32 v{vAl}, v{vM}, v{vMn}")
            g(f"v_sub_f32 v{vT}, v{vT}, v{vMn}")
            g(f"v_exp_f32 v{vAl}, v{vAl}")
            g(f"v_exp_f32 v{vT}, v{vT}")
            g(f"v_mov_b32 v{vM}, v{vMn}")
            g(f"v_cvt_pk_bf16_f32 v{vPA}, v{vT}, 0")
            g(f"v_cvt_pk_bf16_f32 v{vPB}, 0, v{vT}")
            g(f"v_fma_f32 v{vL}, v{vL}, v{vAl}, v{vT}")
            for j in range(8):
                g(f"v_mul_f32 v{vAcc+j}, v{vAl}, v{vAcc+j}")
        for i in range(0, nl, 2):
            n = (2*nl - 2) if not last else (nl - 2 - i)
            g(f"s_waitcnt vmcnt({n})")
            if mode == "full":
                for k in (i, i+1):
                    for e in range(4):
                        g(f"v_dot2c_f32_bf16_dpp v{vAcc+2*e}, v{vPA}, v{vV+4*k+e} row_newbcast:{k} row_mask:0xf bank_mask:0xf")
                        g(f"v_dot2c_f32_bf16_dpp v{vAcc+2*e+1}, v{vPB}, v{vV+4*k+e} row_newbcast:{k} row_mask:0xf bank_mask:0xf")
            if not last:
                vload(i); vload(i+1)

    if nt > 1 and unroll:
        for t in range(nt-1):
            tile(False)
            stamp(4+t)
    elif nt > 1:
        g(f"s_mov_b32 s{sCnt}, {nt-1}")
        if diag: g("s_mov_b32 m0, 4")
        g(".p2align 6")
        g("L_loop:")
        tile(False)
        if diag:
            stamp("m0")
            g("s_add_u32 m0, m0, 1")
        g(f"s_sub_u32 s{sCnt}, s{sCnt}, 1")
        g(f"s_cmp_lg_u32 s{sCnt}, 0")
        g("s_cbranch_scc1 L_loop")
    tile(True)
    stamp(24)

    g("s_nop 3")
    g(f"v_mov_b32 v{vT}, v{vM}")
    g(f"v_mov_b32 v{vT+1}, v{vM}")
    g("s_nop 1")
    g(f"v_permlane32_swap_b32 v{vT}, v{vT+1}")
    g(f"v_max_f32 v{vT}, v{vT}, v{vT+1}")
    g(f"v_mov_b32 v{vT+1}, v{vT}")
    g("s_nop 1")
    g(f"v_permlane16_swap_b32 v{vT}, v{vT+1}")
    g(f"v_max_f32 v{vMn}, v{vT}, v{vT+1}")
    g(f"v_sub_f32 v{vAl}, v{vM}, v{vMn}")
    g(f"v_exp_f32 v{vAl}, v{vAl}")
    g("s_nop 0")
    g(f"v_mul_f32 v{vL}, v{vAl}, v{vL}")
    for j in range(8):
        g(f"v_mul_f32 v{vAcc+j}, v{vAl}, v{vAcc+j}")
    for r in (8, 4, 2, 1):
        g(f"v_add_f32_dpp v{vL}, v{vL}, v{vL} row_ror:{r} row_mask:0xf bank_mask:0xf")
        if r == 8:
            for j in range(4):
                g(f"v_permlane32_swap_b32 v{vAcc+j}, v{vAcc+j+4}")
        elif r == 4:
            for j in range(4):
                g(f"v_add_f32 v{vAcc+j}, v{vAcc+j}, v{vAcc+j+4}")
        elif r == 2:
            g("s_nop 0")
            for j in range(2):
                g(f"v_permlane16_swap_b32 v{vAcc+j}, v{vAcc+j+2}")
        else:
            for j in range(2):
                g(f"v_add_f32 v{vAcc+j}, v{vAcc+j}, v{vAcc+j+2}")
    g(f"v_mov_b32 v{vT}, v{vL}")
    g("s_nop 1")
    g(f"v_permlane32_swap_b32 v{vT}, v{vL}")
    g(f"v_add_f32 v{vL}, v{vT}, v{vL}")
    g(f"v_mov_b32 v{vT}, v{vL}")
    g("s_nop 1")
    g(f"v_permlane16_swap_b32 v{vT}, v{vL}")
    g(f"v_add_f32 v{vAcc+3}, v{vT}, v{vL}")
    g(f"v_mov_b32 v{vAcc+2}, v{vMn}")
    vR = vK
    lds = 0
    if waves > 1:
        lds = waves * 1024
        g(f"s_lshl_b32 s{sT1}, s{sWave}, 10")
        g(f"v_add_u32 v{vT}, s{sT1}, v{vLane16}")
        g(f"ds_write_b128 v{vT}, v[{vAcc}:{vAcc+3}]")
        g("s_waitcnt lgkmcnt(0)")
        stamp(25)
        g("s_barrier")
        stamp(26)
        g(f"s_cmp_lg_u32 s{sWave}, 0")
        g("s_cbranch_scc1 L_fin")
        for w in range(waves):
            g(f"ds_read_b128 v[{vR+4*w}:{vR+4*w+3}], v{vLane16} offset:{w*1024}")
        def combine(n):
            g(f"v_mov_b32 v{vAcc+2}, v{vR+2}")
            for i in range(1, n):
                g(f"v_max_f32 v{vAcc+2}, v{vAcc+2}, v{vR+4*i+2}")
            for i in range(n):
                g(f"v_sub_f32 v{vR+4*i+2}, v{vR+4*i+2}, v{vAcc+2}")
            for i in range(n):
                g(f"v_exp_f32 v{vR+4*i+2}, v{vR+4*i+2}")
            g("s_nop 0")
            for j in (0, 1, 3):
                g(f"v_mul_f32 v{vAcc+j}, v{vR+j}, v{vR+2}")
            for i in range(1, n):
                for j in (0, 1, 3):
                    g(f"v_fma_f32 v{vAcc+j}, v{vR+4*i+j}, v{vR+4*i+2}, v{vAcc+j}")
        g("s_waitcnt lgkmcnt(0)")
        combine(waves)
    else:
        def combine(n):
            raise NotImplementedError
    if split > 1:
        g(f"s_mul_i32 s{sT1}, s{sHead}, {split*1024}")
        g(f"s_lshl_b32 s{sT2}, s{sSplit}, 10")
        g(f"v_add_u32 v{vT+1}, s{sT1}, v{vLane16}")
        g(f"v_add_u32 v{vT}, s{sT2}, v{vT+1}")
        g(f"global_store_dwordx4 v{vT}, v[{vAcc}:{vAcc+3}], s[{sWs}:{sWs+1}] sc0 sc1")
        g(f"s_lshr_b32 s{sT1}, s{sHead}, 1")
        g(f"s_lshl_b32 s{sT1}, s{sT1}, 2")
        g(f"s_and_b32 s{sT2}, s{sHead}, 1")
        g(f"s_lshl_b32 s{sT2}, s{sT2}, 4")
        g(f"s_lshl_b32 s{sT3}, 1, s{sT2}")
        g(f"v_mov_b32 v{vT+2}, s{sT1}")
        g(f"v_mov_b32 v{vT+3}, s{sT3}")
        stamp(27)
        g("s_waitcnt vmcnt(0)")
        stamp(28)
        g("s_mov_b64 exec, 1")
        g(f"global_atomic_add v{vT+4}, v{vT+2}, v{vT+3}, s[{sDbg}:{sDbg+1}] sc0")
        g("s_waitcnt vmcnt(0)")
        g(f"v_readfirstlane_b32 s{sT1}, v{vT+4}")
        g("s_mov_b64 exec, -1")
        g(f"s_lshr_b32 s{sT1}, s{sT1}, s{sT2}")
        g(f"s_and_b32 s{sT1}, s{sT1}, 0xffff")
        stamp(29)
        g(f"s_cmp_lg_u32 s{sT1}, {split-1}")
        g("s_cbranch_scc1 L_fin")
        for i in range(split):
            if i and i % 4 == 0:
                g(f"v_add_u32 v{vT+1}, 4096, v{vT+1}")
            g(f"global_load_dwordx4 v[{vR+4*i}:{vR+4*i+3}], v{vT+1}, s[{sWs}:{sWs+1}] offset:{(i%4)*1024} sc0 sc1")
        g("s_waitcnt vmcnt(0)")
        combine(split)
    g(f"v_rcp_f32 v{vT}, v{vAcc+3}")
    g(f"v_and_b32 v{vT+1}, 15, v0")
    g(f"v_lshrrev_b32 v{vT+2}, 4, v0")
    g(f"v_lshl_add_u32 v{vT+1}, v{vT+1}, 2, v{vT+2}")
    g(f"v_lshlrev_b32 v{vT+1}, 2, v{vT+1}")
    g(f"s_lshl_b32 s{sT1}, s{sHead}, 8")
    g(f"v_add_u32 v{vT+1}, s{sT1}, v{vT+1}")
    g(f"v_mul_f32 v{vAcc}, v{vAcc}, v{vT}")
    g(f"v_mul_f32 v{vAcc+1}, v{vAcc+1}, v{vT}")
    g(f"v_cvt_pk_bf16_f32 v{vAcc}, v{vAcc}, v{vAcc+1}")
    g(f"global_store_dword v{vT+1}, v{vAcc}, s[{sOut}:{sOut+1}]")
    g("L_fin:")
    if diag:
        g("s_waitcnt vmcnt(0)")
        stamp(30)
        g(f"s_getreg_b32 s60, hwreg(HW_REG_XCC_ID)")
        g(f"v_writelane_b32 v{vStamp}, s60, 31")
        g(f"s_getreg_b32 s60, hwreg(HW_REG_HW_ID)")
        g(f"v_writelane_b32 v{vStamp}, s60, 32")
        g(f"s_mul_i32 s60, s2, {waves}")
        g(f"s_add_u32 s60, s60, s{sWave}")
        g(f"s_lshl_b32 s60, s60, 8")
        g(f"s_add_u32 s60, s60, 0x1000000")
        g(f"v_lshlrev_b32 v{vT}, 2, v0")
        g(f"v_add_u32 v{vT}, s60, v{vT}")
        g(f"global_store_dword v{vT}, v{vStamp}, s[{sWs}:{sWs+1}]")
    g("L_end:")
    g("s_endpgm")

    body = g.text()
    out = HEADER
    out += f"; @launch grid=({nwg},1,1) block=({waves*64},1,1) lds={lds}\n"
    out += '.amdgcn_target "amdgcn-amd-amdhsa--gfx950"\n.text\n'
    out += f".globl {name}\n.p2align 8\n.type {name},@function\n{name}:\n"
    out += body
    out += f""".section .rodata,"a"
.p2align 6
.amdhsa_kernel {name}
  .amdhsa_next_free_vgpr {nvgpr}
  .amdhsa_next_free_sgpr {nsgpr}
  .amdhsa_accum_offset {(nvgpr+3)//4*4}
  .amdhsa_group_segment_fixed_size 0
  .amdhsa_kernarg_size 72
  .amdhsa_user_sgpr_count 2
  .amdhsa_user_sgpr_kernarg_segment_ptr 1
  .amdhsa_system_sgpr_workgroup_id_x 1
  .amdhsa_float_denorm_mode_32 3
.end_amdhsa_kernel
"""
    return out

if __name__ == "__main__":
    ap = argparse.ArgumentParser()
    ap.add_argument("--split", type=int, default=2)
    ap.add_argument("--waves", type=int, default=8)
    ap.add_argument("--mode", default="full")
    ap.add_argument("--cache", default="nt")
    ap.add_argument("--pattern", default="inter")
    ap.add_argument("--headmap", default="xcd")
    ap.add_argument("--diag", action="store_true")
    ap.add_argument("--unroll", action="store_true")
    ap.add_argument("-o", default="-")
    a = ap.parse_args()
    s = gen(split=a.split, waves=a.waves, mode=a.mode, cache=a.cache, pattern=a.pattern, headmap=a.headmap, diag=a.diag, unroll=a.unroll)
    if a.o == "-": sys.stdout.write(s)
    else: open(a.o, "w").write(s)
```

```python
import gen, mk, sys
specs = []
def add(name, check, **kw):
    open(name + ".s", "w").write(gen.gen(**kw))
    nw = 128*kw.get("split",2)*kw.get("waves",8)
    specs.append(mk.build(name + ".s", check + (2*nw if kw.get("diag") else 0)))
add("e_ntnt", 1, waves=4)
add("e_defdef", 1, waves=4, cache="")
add("e_ntdef", 1, waves=4, cache="nt", cachev="")
add("e_defnt", 1, waves=4, cache="", cachev="nt")
open("specs.txt", "w").write(" ".join(specs))
print(" ".join('"work/'+s.split(":")[0]+'",' for s in specs))
```
